```python
import torch

def _softmax(x, axis=-1):
    return torch.softmax(x, dim=axis)

def _gelu(x):
    return torch.nn.functional.gelu(x, approximate='tanh')

def _silu(x):
    return torch.nn.functional.silu(x)

def _sigmoid(x):
    return torch.sigmoid(x)

def _layernorm(x, axis=-1, eps=1e-05):
    m = x.mean(dim=axis, keepdim=True)
    v = x.var(dim=axis, keepdim=True, unbiased=False)
    return (x - m) / torch.sqrt(v + eps)

def _scatter_add(tgt, idx, src, axis=0):
    return tgt.clone().index_add_(axis, idx, src)

def _segment_sum(src, seg, n):
    out = torch.zeros((n,) + src.shape[1:], dtype=src.dtype)
    return out.index_add_(0, seg, src)

def _pad(x, pw):
    flat = tuple((v for pair in reversed(pw) for v in pair))
    return torch.nn.functional.pad(x, flat)
kernel_name = 'adaLN_cond__sliding_local_dilated__dense_activation_silu__prompt'

def setup_inputs():

    _w = lambda a: (lambda t: t.to(torch.bfloat16) if t.is_floating_point() else t)(torch.as_tensor(a))

    def _A_setup():
        B, S, D = (1, 2048, 448)
        return {'x': _w((lambda *s: torch.randn(*s, dtype=torch.bfloat16) * 0.05)(B, S, D)), 'wqkv': _w((lambda *s: torch.randn(*s, dtype=torch.bfloat16) * 0.05)(D, 3 * D)), 'wo': _w((lambda *s: torch.randn(*s, dtype=torch.bfloat16) * 0.05)(D, D))}
    _A_in = _A_setup()

    def _B_setup():
        B, S, D, F = (1, 2048, 448, 1792)
        return {'x': _w((lambda *s: torch.randn(*s, dtype=torch.bfloat16) * 0.05)(B, S, D)), 'w1': _w((lambda *s: torch.randn(*s, dtype=torch.bfloat16) * 3.2)(D, F) * D ** (-0.5)), 'w2': _w((lambda *s: torch.randn(*s, dtype=torch.bfloat16) * 0.4)(F, D) * F ** (-0.5))}
    _B_in = _B_setup()
    return {'A_x': _A_in['x'], 'A_wqkv': _A_in['wqkv'], 'A_wo': _A_in['wo'], 'B_x': _B_in['x'], 'B_w1': _B_in['w1'], 'B_w2': _B_in['w2'], 'c': _w((lambda *s: torch.randn(*s, dtype=torch.bfloat16) * 0.1)(1, 448) * 8.0), 'w_mod': _w((lambda *s: torch.randn(*s, dtype=torch.bfloat16) * 0.1)(448, 6 * 448) * 448 ** (-0.5) * 8.0)}

def reference(A_x, A_wqkv, A_wo, B_x, B_w1, B_w2, c, w_mod):

    def _A_ref(x, wqkv, wo):
        B, S, D = x.shape
        H = 16
        Dh = D // H
        W, dil = (8, 2)
        qkv = (lambda x, *d: x.permute(*d))((x @ wqkv).reshape(B, S, 3, H, Dh), 2, 0, 3, 1, 4)
        q, k, v = (qkv[0], qkv[1], qkv[2])
        scale = Dh ** (-0.5)
        pos = torch.arange(S)
        off = torch.arange(W) * dil
        idx = pos[:, None] - off[None, :]
        mask = idx >= 0
        idx_c = torch.where(mask, idx, 0).reshape(-1)
        kg = k[:, :, idx_c, :].reshape(B, H, S, W, Dh)
        vg = v[:, :, idx_c, :].reshape(B, H, S, W, Dh)
        logits = torch.einsum('bhsd,bhswd->bhsw', q, kg) * scale
        logits = torch.where(mask[None, None, :, :], logits, -1000000000.0)
        attn = _softmax(logits, axis=-1)
        o = torch.einsum('bhsw,bhswd->bhsd', attn, vg)
        return (lambda x, *d: x.permute(*d))(o, 0, 2, 1, 3).reshape(B, S, D) @ wo

    def _B_ref(x, w1, w2):
        h = torch.einsum('bsd,df->bsf', x, w1)
        h = _silu(h)
        out = torch.einsum('bsf,fd->bsd', h, w2)
        return out
    x = A_x
    mod = (_silu(c) @ w_mod).reshape(c.shape[0], 6, 1, -1)
    sa, ca, ga, sb, cb, gb = (mod[:, 0].clone(), mod[:, 1].clone(), mod[:, 2].clone(), mod[:, 3].clone(), mod[:, 4].clone(), mod[:, 5].clone())
    h = _layernorm(x, axis=-1) * (1 + ca) + sa
    x = x + ga * _A_ref(h, A_wqkv, A_wo)
    h = _layernorm(x, axis=-1) * (1 + cb) + sb
    x = x + gb * _B_ref(h, B_w1, B_w2)
    return x
```

```python
import re

_REG = re.compile(r'^(-|abs\()?([vas])(?:(\d+)|\[(\d+):(\d+)\])\)?$')

def regs_of(op):
    op = op.strip()
    if op in ('vcc',): return [('s', 106), ('s', 107)]
    if op in ('exec',): return [('s', 126), ('s', 127)]
    if op == 'm0': return [('s', 124)]
    if op == 'scc': return []
    m = _REG.match(op)
    if not m: return []
    k = m.group(2)
    if m.group(3) is not None:
        return [(k, int(m.group(3)))]
    return [(k, i) for i in range(int(m.group(4)), int(m.group(5)) + 1)]

TRANS = ('v_exp_f32', 'v_log_f32', 'v_rcp_f32', 'v_rsq_f32', 'v_sqrt_f32', 'v_sin_f32', 'v_cos_f32')

class Ins:
    __slots__ = ('op', 'ops', 'mods', 'text', 'kind', 'rd', 'wr', 'srcA', 'srcB', 'srcC', 'passes', 'nop', 'dpp', 'comment')
    def __init__(self, op, ops, mods='', comment=''):
        self.op = op; self.ops = [str(o) for o in ops]; self.mods = mods; self.comment = comment
        self.nop = 0; self.srcA = self.srcB = self.srcC = []; self.passes = 0
        self.dpp = ('row_' in mods) or ('quad_perm' in mods)
        o = self.ops
        R = regs_of
        if op == 's_nop':
            self.kind = 'nop'; self.nop = int(o[0]) + 1; self.rd = []; self.wr = []
        elif op.startswith('v_mfma'):
            self.kind = 'mfma'; self.wr = R(o[0]); self.srcA = R(o[1]); self.srcB = R(o[2]); self.srcC = R(o[3])
            self.rd = self.srcA + self.srcB + self.srcC
            self.passes = 8 if '32x32x16' in op else 4
        elif op.startswith('v_'):
            self.kind = 'valu'
            base = op.replace('_dpp', '').replace('_e64', '').replace('_e32', '')
            if base.startswith('v_cmp'):
                self.wr = R(o[0]); self.rd = sum((R(x) for x in o[1:]), [])
            elif base in ('v_permlane16_swap_b32', 'v_permlane32_swap_b32', 'v_swap_b32'):
                self.wr = R(o[0]) + R(o[1]); self.rd = R(o[0]) + R(o[1])
            elif base in ('v_add_co_u32', 'v_sub_co_u32', 'v_addc_co_u32'):
                self.wr = R(o[0]) + R(o[1]); self.rd = sum((R(x) for x in o[2:]), [])
            else:
                self.wr = R(o[0]); self.rd = sum((R(x) for x in o[1:]), [])
                if base in ('v_fmac_f32', 'v_dot2c_f32_bf16') or self.dpp:
                    self.rd = self.rd + R(o[0])
        elif op.startswith('buffer_load') or op.startswith('global_load'):
            self.kind = 'vmem'
            if ' lds' in (' ' + mods) or 'load_lds' in op:
                self.wr = []; self.rd = sum((R(x) for x in o), []) + [('s', 124)]
                self.kind = 'dma'
            else:
                self.wr = R(o[0]); self.rd = sum((R(x) for x in o[1:]), [])
        elif op.startswith('buffer_store') or op.startswith('global_store') or op.startswith('buffer_atomic') or op.startswith('global_atomic'):
            self.kind = 'vstore'; self.wr = []; self.rd = sum((R(x) for x in o), [])
            if 'atomic' in op and 'sc0' in mods: self.wr = R(o[0])
        elif op.startswith('ds_read') or op.startswith('ds_bpermute') or op.startswith('ds_swizzle') or op.startswith('ds_permute'):
            self.kind = 'ds'; self.wr = R(o[0]); self.rd = sum((R(x) for x in o[1:]), [])
        elif op.startswith('ds_'):
            self.kind = 'ds'; self.wr = []; self.rd = sum((R(x) for x in o), [])
        elif op.startswith('s_'):
            self.kind = 'salu'
            if op.startswith('s_cmp') or op.startswith('s_cbranch') or op in ('s_branch', 's_waitcnt', 's_barrier', 's_endpgm', 's_sleep', 's_setprio'):
                self.wr = []; self.rd = sum((R(x) for x in o), [])
            else:
                self.wr = R(o[0]) if o else []; self.rd = sum((R(x) for x in o[1:]), [])
                if 'saveexec' in op: self.wr = self.wr + R('exec')
        else:
            self.kind = 'other'; self.wr = []; self.rd = []
        t = op + (' ' + ', '.join(self.ops) if self.ops else '') + (' ' + mods if mods else '')
        self.text = t

class Label:
    def __init__(self, name): self.name = name; self.kind = 'label'; self.text = name + ':'; self.nop = 0

class Raw:
    def __init__(self, text): self.text = text; self.kind = 'raw'; self.nop = 0

def _inter(a, b):
    return bool(set(a) & set(b))

def required(p, c):
    need = 0
    if p.kind == 'valu':
        pv = [r for r in p.wr if r[0] in 'va']
        ps = [r for r in p.wr if r[0] == 's']
        isdot = p.op.startswith('v_dot')
        if c.kind == 'mfma' and _inter(pv, c.rd): need = max(need, 2)
        if isdot and c.kind in ('valu', 'mfma', 'vmem', 'vstore', 'ds', 'dma') and (_inter(pv, c.rd) or _inter(pv, c.wr)):
            need = max(need, 3)
        if c.kind == 'valu':
            if p.op in TRANS and _inter(pv, c.rd): need = max(need, 1)
            if c.op.startswith('v_permlane') and _inter(pv, c.rd): need = max(need, 2)
            if c.dpp and _inter(pv, c.rd): need = max(need, 2)
            if c.op.startswith('v_readlane') or c.op.startswith('v_readfirstlane'):
                if _inter(pv, c.rd): need = max(need, 1)
                if _inter(ps, c.rd): need = max(need, 4)
            if ps and _inter(ps, c.rd): need = max(need, 2)
        if ps and c.kind in ('vmem', 'vstore', 'dma') and _inter(ps, c.rd): need = max(need, 5)
        if ps and c.kind == 'salu' and _inter(ps, c.rd): need = max(need, 1)
    elif p.kind == 'mfma':
        P = p.passes
        if c.kind == 'mfma':
            if _inter(p.wr, c.srcA) or _inter(p.wr, c.srcB): need = max(need, P + 4)
            if _inter(p.wr, c.srcC):
                if p.wr == c.srcC and p.passes == c.passes: pass
                else: need = max(need, P + 2)
            elif _inter(p.wr, c.wr): need = max(need, P + 4)
        elif c.kind in ('valu', 'vmem', 'vstore', 'ds', 'dma'):
            if _inter(p.wr, c.rd) or _inter(p.wr, c.wr): need = max(need, P + 4)
            if c.kind == 'valu' and _inter(p.srcC, c.wr): need = max(need, P - 1)
    elif p.kind == 'salu':
        if ('s', 124) in p.wr and c.kind == 'dma': need = max(need, 1)
    elif p.kind == 'vstore':
        if ('x4' in p.op or 'x3' in p.op) and c.kind in ('valu', 'vmem', 'ds', 'mfma'):
            data = regs_of(p.ops[0]) if p.op.startswith('buffer') else regs_of(p.ops[1])
            if _inter(data, c.wr): need = max(need, 2)
    return need

class Asm:
    def __init__(self):
        self.items = []
    def I(self, op, *ops, mods='', comment=''):
        ins = Ins(op, ops, mods, comment); self.items.append(ins); return ins
    def __getattr__(self, name):
        if name.startswith(('v_', 's_', 'ds_', 'buffer_', 'global_')):
            def f(*ops, mods='', comment=''):
                return self.I(name, *ops, mods=mods, comment=comment)
            return f
        raise AttributeError(name)
    def label(self, n): self.items.append(Label(n))
    def raw(self, t): self.items.append(Raw(t))
    def add(self, ins): self.items.append(ins)
    def waitcnt(self, vm=None, lgkm=None):
        s = []
        if vm is not None: s.append('vmcnt(%d)' % vm)
        if lgkm is not None: s.append('lgkmcnt(%d)' % lgkm)
        return self.I('s_waitcnt', ' '.join(s))
    def finish(self):
        out = []
        hist = []
        for it in self.items:
            if it.kind in ('label', 'raw'):
                out.append(it); continue
            need = 0; dist = 0
            for p in reversed(hist):
                if dist >= 20: break
                r = required(p, it)
                if r - dist > need: need = r - dist
                dist += p.nop if p.kind == 'nop' else 1
            while need > 0:
                n = min(need, 16)
                nopi = Ins('s_nop', [n - 1]); out.append(nopi); hist.append(nopi); need -= n
            out.append(it); hist.append(it)
            if it.op in ('s_endpgm', 's_branch'): hist = []
            if len(hist) > 64: hist = hist[-40:]
        lines = []
        for it in out:
            if it.kind == 'label': lines.append(it.text)
            elif it.kind == 'raw': lines.append(it.text)
            else: lines.append('    ' + it.text + (('    ; ' + it.comment) if it.comment else ''))
        return '\n'.join(lines) + '\n'

def v(i, n=1): return 'v%d' % i if n == 1 else 'v[%d:%d]' % (i, i + n - 1)
def a(i, n=1): return 'a%d' % i if n == 1 else 'a[%d:%d]' % (i, i + n - 1)
def s(i, n=1): return 's%d' % i if n == 1 else 's[%d:%d]' % (i, i + n - 1)

def interleave(main, fill, every=1, per=2):
    out = []; fi = 0
    for k, m in enumerate(main):
        out.append(m)
        if (k + 1) % every == 0:
            for _ in range(per):
                if fi < len(fill): out.append(fill[fi]); fi += 1
    out.extend(fill[fi:])
    return out
```

```python
from dsl import *
from layout import *
from gen import srd, bf16r, DPPM, X_BYTES, LOG2E

class VM:
    def __init__(self, A): self.A = A; self.tags = []
    def issue(self, tag): self.tags.append(tag)
    def wait(self, tag):
        idx = max(i for i, t in enumerate(self.tags) if t == tag)
        n = len(self.tags) - 1 - idx
        self.A.waitcnt(vm=min(n, 63))

import os
STAMP = int(os.environ.get('STAMP', '0'))
WS_TS = 15 << 20
def stamp(A, k):
    if STAMP:
        A.s_memtime(s(80 + 2 * k, 2))
def stamp_flush(A, n, srd_ws, wave_s, kid):
    if not STAMP: return
    A.waitcnt(lgkm=0)
    A.s_lshl_b32(s(78), s(2), 2)
    A.s_add_u32(s(78), s(78), s(wave_s))
    A.s_lshl_b32(s(78), s(78), 6)
    A.s_add_u32(s(78), s(78), WS_TS + kid * 65536)
    A.v_mov_b32(v(0), 0)
    for k in range(n):
        A.s_sub_u32(s(79), s(80 + 2 * k), s(80))
        A.v_mov_b32(v(1), s(79))
        A.buffer_store_dword(v(1), v(0), s(srd_ws, 4), s(78), mods='offen offset:%d' % (4 * k))

def allreduce_g(A, op, x, t):
    A.v_mov_b32(v(t), v(x))
    A.v_permlane16_swap_b32(v(x), v(t))
    A.I(op, v(x), v(x), v(t))
    A.v_mov_b32(v(t), v(x))
    A.v_permlane32_swap_b32(v(x), v(t))
    A.I(op, v(x), v(x), v(t))

K1_GT = 86016
K1_GP = K1_GT + 1792
K1_SP = K1_GP + 896
K1_LDS = K1_SP + 896

def k1(A):
    vm = VM(A)
    AF = lambda u, ks: 32 + (u * 14 + ks) * 4
    ACC = lambda u, c: (u * 6 + c) * 4
    BF = lambda buf, c: 72 + buf * 24 + c * 4
    GT = lambda buf: 200 + buf * 8
    SPT = lambda buf: 216 + buf * 4
    TMP = 224
    A.s_cmp_ge_u32(s(2), 256)
    A.s_cbranch_scc1('k1_end')
    stamp(A, 0)
    A.s_load_dwordx4(s(4, 4), s(0, 2), 0)
    A.s_load_dwordx2(s(8, 2), s(0, 2), 80)
    A.v_and_b32(v(1), 63, v(0))
    A.v_and_b32(v(2), 15, v(0))
    A.v_bfe_u32(v(3), v(0), 4, 2)
    A.v_lshrrev_b32(v(4), 6, v(0))
    A.v_readfirstlane_b32(s(24), v(4))
    A.s_and_b32(s(25), s(2), 7)
    A.s_lshr_b32(s(26), s(2), 3)
    A.s_lshr_b32(s(27), s(25), 1)
    A.s_lshl_b32(s(27), s(27), 2)
    A.s_and_b32(s(28), s(26), 3)
    A.s_add_u32(s(27), s(27), s(28))
    A.s_and_b32(s(28), s(25), 1)
    A.s_lshl_b32(s(28), s(28), 3)
    A.s_lshr_b32(s(29), s(26), 2)
    A.s_add_u32(s(28), s(28), s(29))
    A.s_and_b32(s(29), s(24), 1)
    A.s_lshr_b32(s(30), s(24), 1)
    A.s_lshl_b32(s(31), s(27), 7)
    A.s_lshl_b32(s(32), s(30), 6)
    A.s_add_u32(s(31), s(31), s(32))
    A.s_add_u32(s(32), s(31), s(29))
    A.s_sub_u32(s(32), s(32), 32)
    A.v_lshlrev_b32(v(4), 1, v(2))
    A.v_add_u32(v(4), s(32), v(4))
    A.s_movk_i32(s(33), 896)
    A.v_mul_lo_u32(v(4), v(4), s(33))
    A.v_lshl_add_u32(v(4), v(3), 4, v(4))
    A.v_add_u32(v(5), 32 * 896, v(4))
    A.v_add_u32(v(6), 64 * 896, v(4))
    A.v_lshrrev_b32(v(7), 2, v(1))
    A.s_movk_i32(s(33), 2688)
    A.v_mul_lo_u32(v(7), v(7), s(33))
    A.v_and_b32(v(8), 3, v(1))
    A.v_lshrrev_b32(v(9), 5, v(1))
    A.v_lshlrev_b32(v(9), 1, v(9))
    A.v_xor_b32(v(8), v(8), v(9))
    A.v_lshl_add_u32(v(7), v(8), 4, v(7))
    A.s_lshl_b32(s(34), s(30), 5)
    A.s_lshl_b32(s(35), s(29), 4)
    A.s_add_u32(s(34), s(34), s(35))
    A.s_mul_i32(s(34), s(34), 2688)
    A.s_mul_i32(s(35), s(28), 56)
    A.s_add_u32(s(34), s(34), s(35))
    A.s_mul_i32(s(36), s(30), 6144)
    A.s_lshl_b32(s(37), s(29), 10)
    A.s_add_u32(s(36), s(36), s(37))
    A.v_lshrrev_b32(v(8), 2, v(2))
    A.v_lshl_add_u32(v(8), v(3), 3, v(8))
    A.v_lshlrev_b32(v(8), 6, v(8))
    A.v_and_b32(v(9), 3, v(2))
    A.v_lshl_add_u32(v(8), v(9), 3, v(8))
    A.v_and_b32(v(9), 1, v(3))
    A.v_lshl_add_u32(v(8), v(9), 5, v(8))
    A.v_xor_b32(v(9), 32, v(8))
    A.v_lshlrev_b32(v(10), 5, v(3))
    A.v_add_u32(v(10), K1_GT, v(10))
    A.v_lshlrev_b32(v(11), 4, v(3))
    A.v_add_u32(v(11), K1_GP, v(11))
    A.v_add_u32(v(12), 896, v(11))
    A.v_cmp_eq_u32('vcc', 1, v(2))
    A.v_cndmask_b32(v(11), v(11), v(12), 'vcc')
    A.v_cmp_gt_u32(s(40, 2), 2, v(2))
    A.v_lshlrev_b32(v(12), 2, v(0))
    A.waitcnt(lgkm=0)
    srd(A, 12, 4, X_BYTES)
    srd(A, 16, 6, 448 * 2688)
    srd(A, 20, 8, WS_SIZE)
    A.s_mov_b32(s(38), WS_MODB)
    A.buffer_load_dword(v(13), v(12), s(20, 4), s(38), mods='offen offset:896'); vm.issue('mod')
    A.buffer_load_dword(v(14), v(12), s(20, 4), s(38), mods='offen'); vm.issue('mod')
    for m in range(7):
        for sec in range(3):
            A.s_add_u32('m0', s(36), m * 12288 + sec * 2048)
            A.s_add_u32(s(39), s(34), m * 64 * 2688 + sec * 896)
            A.buffer_load_dwordx4(v(7), s(16, 4), s(39), mods='offen lds'); vm.issue('dma')
    def aload(ks):
        for u in range(3):
            A.buffer_load_dwordx4(v(AF(u, ks), 4), v(4 + u), s(12, 4), 0, mods='offen offset:%d' % (ks * 64)); vm.issue(('A', ks))
    for ks in range(13): aload(ks)
    stamp(A, 1)
    vm.wait('mod')
    stamp(A, 2)
    A.v_and_b32(v(16), '0xffff', v(13))
    A.v_and_b32(v(17), '0xffff0000', v(13))
    A.v_lshlrev_b32(v(15), 3, v(0))
    A.v_cmp_gt_u32('vcc', 224, v(0))
    A.s_and_saveexec_b64(s(42, 2), 'vcc')
    A.v_add_u32(v(15), K1_GT, v(15))
    A.v_add_u32(v(12), K1_GP, v(12))
    A.ds_write_b64(v(15), v(16, 2))
    A.ds_write_b32(v(12), v(13))
    A.ds_write_b32(v(12), v(14), mods='offset:896')
    A.s_mov_b64('exec', s(42, 2))
    vm.wait('dma')
    stamp(A, 3)
    aload(13)
    A.s_lshr_b32(s(44), s(31), 1)
    A.s_lshl_b32(s(45), s(29), 10)
    A.v_lshlrev_b32(v(12), 3, v(2))
    A.v_lshlrev_b32(v(15), 5, v(3))
    for u in range(3):
        A.s_add_i32(s(46), s(44), 16 * (u - 1))
        A.s_max_i32(s(46), s(46), 0)
        A.s_add_u32(s(46), s(46), s(45))
        A.s_lshl_b32(s(46), s(46), 3)
        A.s_add_u32(s(46), s(46), WS_ST1)
        A.buffer_load_dwordx2(v(18 + 2 * u, 2), v(12), s(20, 4), s(46), mods='offen'); vm.issue('st')
        A.buffer_load_dwordx4(a(120 + 8 * u, 4), v(15), s(20, 4), s(46), mods='offen'); vm.issue('st')
        A.buffer_load_dwordx4(a(124 + 8 * u, 4), v(15), s(20, 4), s(46), mods='offen offset:16'); vm.issue('st')
    A.waitcnt(lgkm=0)
    A.s_barrier()

    def rd_tab(ks):
        L = []
        L.append(Ins('ds_read_b128', [v(GT(ks & 1), 4), v(10)], 'offset:%d' % (ks * 128)))
        L.append(Ins('ds_read_b128', [v(GT(ks & 1) + 4, 4), v(10)], 'offset:%d' % (ks * 128 + 16)))
        L.append(Ins('ds_read_b128', [v(SPT(ks & 1), 4), v(11)], 'offset:%d' % (ks * 64)))
        return L
    def rd_B(ks):
        L = []
        koff = (ks % 7) * 6144
        for sec in range(3):
            for t in range(2):
                c = sec * 2 + t
                for hf in range(2):
                    L.append(Ins('ds_read_b64_tr_b16', [a(BF(ks & 1, c) + 2 * hf, 2), v(8 + t)], 'offset:%d' % (koff + sec * 2048 + hf * 256)))
        return L
    def scale(ks):
        L = []
        g0 = GT(ks & 1)
        for u in range(3):
            af = AF(u, ks); t0 = TMP + 8 * u
            for j in range(4):
                L.append(Ins('v_dot2_f32_bf16', [v(t0 + 2 * j), v(af + j), v(g0 + 2 * j), 0]))
                L.append(Ins('v_dot2_f32_bf16', [v(t0 + 2 * j + 1), v(af + j), v(g0 + 2 * j + 1), 0]))
            for j in range(4):
                L.append(Ins('v_cvt_pk_bf16_f32', [v(af + j), v(t0 + 2 * j), v(t0 + 2 * j + 1)]))
            if u == 0:
                for j in range(4):
                    L.append(Ins('v_cndmask_b32', [v(af + j), v(af + j), v(SPT(ks & 1) + j), s(40, 2)]))
        return L
    def mfmas(ks):
        L = []
        for c in range(6):
            for u in range(3):
                acc = a(ACC(u, c), 4); cin = 0 if ks == 0 else acc
                if c < 4:
                    L.append(Ins('v_mfma_f32_16x16x32_bf16', [acc, a(BF(ks & 1, c), 4), v(AF(u, ks), 4), cin]))
                else:
                    L.append(Ins('v_mfma_f32_16x16x32_bf16', [acc, v(AF(u, ks), 4), a(BF(ks & 1, c), 4), cin]))
        return L
    stamp(A, 4)
    A.waitcnt(lgkm=0)
    for x in rd_tab(0) + rd_B(0): A.add(x)
    A.waitcnt(lgkm=12)
    vm.wait(('A', 0))
    for x in scale(0): A.add(x)
    for x in rd_tab(1): A.add(x)
    for ks in range(14):
        A.waitcnt(lgkm=0)
        if ks + 1 < 14: vm.wait(('A', ks + 1))
        if ks + 1 == 7:
            A.v_add_u32(v(8), 7 * 6144, v(8))
            A.v_add_u32(v(9), 7 * 6144, v(9))
        fill = []
        if ks + 1 < 14:
            rb = rd_B(ks + 1); sc = scale(ks + 1)
            fill = interleave(sc, rb, every=3, per=1)
            if ks + 2 < 14: fill += rd_tab(ks + 2)
        for x in interleave(mfmas(ks), fill, every=1, per=3): A.add(x)

    stamp(A, 5)
    vm.wait('st')
    CS, BS = 48, 64
    for c in range(4):
        for r in range(4):
            A.v_accvgpr_read_b32(v(32 + c * 4 + r), a(ACC(0, c) + r))
    for t in range(2):
        A.v_accvgpr_read_b32(v(80 + 2 * t), a(ACC(0, 4 + t) + 0))
        A.v_accvgpr_read_b32(v(81 + 2 * t), a(ACC(0, 4 + t) + 1))
    A.v_lshlrev_b32(v(12), 2, v(2))
    for q in range(4):
        A.ds_bpermute_b32(v(84 + q), v(12), v(80 + q))
    for q in range(16):
        A.v_mov_b32_dpp(v(CS + q), v(32 + q), mods='row_newbcast:0 ' + DPPM)
        A.v_mov_b32_dpp(v(BS + q), v(32 + q), mods='row_newbcast:1 ' + DPPM)
    QF = lambda u: 100 + (u - 1) * 4
    KF = lambda u: 108 + u * 4
    VF = lambda t, u: 120 + t * 6 + u * 2
    T = 140
    A.v_cmp_eq_u32(s(42, 2), 3, v(3))
    for u in range(3):
        m_, r_ = 18 + 2 * u, 19 + 2 * u
        for isk in ((1,) if u == 0 else (0, 1)):
            for t in range(2):
                c = isk * 2 + t
                for r in range(4):
                    A.v_accvgpr_read_b32(v(T + t * 4 + r), a(ACC(u, c) + r))
            for t in range(2):
                c = isk * 2 + t
                for r in range(4):
                    A.v_fma_f32(v(T + t * 4 + r), '-' + v(m_), v(CS + c * 4 + r), v(T + t * 4 + r))
            for t in range(2):
                c = isk * 2 + t
                for r in range(4):
                    A.v_fma_f32(v(T + t * 4 + r), v(r_), v(T + t * 4 + r), v(BS + c * 4 + r))
            dst = KF(u) if isk else QF(u)
            for q in range(4):
                A.v_cvt_pk_bf16_f32(v(dst + q), v(T + 2 * q), v(T + 2 * q + 1))
            if not isk:
                A.v_cndmask_b32(v(dst + 2), v(dst + 2), 0, s(42, 2))
                A.v_cndmask_b32(v(dst + 3), v(dst + 3), 0, s(42, 2))
    A.waitcnt(lgkm=0)
    for u in range(3):
        for q in range(8):
            A.v_accvgpr_read_b32(v(T + 8 + q), a(120 + 8 * u + q))
        for t in range(2):
            for r in range(4):
                A.v_accvgpr_read_b32(v(T + t * 4 + r), a(ACC(u, 4 + t) + r))
        for t in range(2):
            for r in range(4):
                A.v_fma_f32(v(T + t * 4 + r), '-' + v(T + 8 + 2 * r), v(84 + 2 * t), v(T + t * 4 + r))
        for t in range(2):
            for r in range(4):
                A.v_fma_f32(v(T + t * 4 + r), v(T + 9 + 2 * r), v(T + t * 4 + r), v(85 + 2 * t))
        for t in range(2):
            A.v_cvt_pk_bf16_f32(v(VF(t, u)), v(T + t * 4), v(T + t * 4 + 1))
            A.v_cvt_pk_bf16_f32(v(VF(t, u) + 1), v(T + t * 4 + 2), v(T + t * 4 + 3))
    SC = lambda u: 160 + (u - 1) * 8
    for u in (1, 2):
        A.v_mfma_f32_16x16x32_bf16(v(SC(u), 4), v(KF(u - 1), 4), v(QF(u), 4), 0)
        A.v_mfma_f32_16x16x32_bf16(v(SC(u) + 4, 4), v(KF(u), 4), v(QF(u), 4), 0)
    A.v_lshlrev_b32(v(12), 2, v(3))
    A.v_sub_u32(v(12), v(2), v(12))
    A.s_cmp_eq_u32(s(31), 0)
    A.s_cselect_b32(s(47), 0, 8)
    A.s_mov_b32(s(48), hex(0x3e41848f))
    A.s_mov_b32(s(49), hex(LOG2E))
    A.v_mov_b32(v(13), hex(0xce6e6b28))
    A.v_lshlrev_b32(v(14), 3, v(3))
    A.v_lshlrev_b32(v(15), 4, v(3))
    A.v_sub_u32(v(14), v(14), v(15))
    A.v_add_u32(v(14), v(14), v(5))
    A.s_add_u32(s(50), s(35), WS_O)
    for u in (1, 2):
        sc = SC(u); T2 = 180
        for q in range(4):
            A.v_cvt_pk_bf16_f32(v(T2 + q), v(sc + 2 * q), v(sc + 2 * q + 1))
        for q in range(4):
            A.v_lshlrev_b32(v(sc + 2 * q), 16, v(T2 + q))
            A.v_and_b32(v(sc + 2 * q + 1), '0xffff0000', v(T2 + q))
        for q in range(8):
            A.v_mul_f32(v(sc + q), s(48), v(sc + q))
        for q in range(4):
            A.v_cvt_pk_bf16_f32(v(T2 + q), v(sc + 2 * q), v(sc + 2 * q + 1))
        for q in range(4):
            A.v_lshlrev_b32(v(sc + 2 * q), 16, v(T2 + q))
            A.v_and_b32(v(sc + 2 * q + 1), '0xffff0000', v(T2 + q))
        for r in range(4):
            A.v_add_u32(v(T2), 16 - r, v(12))
            if u == 1: A.v_cmp_gt_u32('vcc', s(47), v(T2))
            else: A.v_cmp_gt_u32('vcc', 8, v(T2))
            A.v_cndmask_b32(v(sc + r), v(13), v(sc + r), 'vcc')
        for r in range(4):
            A.v_subrev_u32(v(T2), r, v(12))
            A.v_cmp_gt_u32('vcc', 8, v(T2))
            A.v_cndmask_b32(v(sc + 4 + r), v(13), v(sc + 4 + r), 'vcc')
        A.v_max3_f32(v(T2), v(sc), v(sc + 1), v(sc + 2))
        A.v_max3_f32(v(T2 + 1), v(sc + 3), v(sc + 4), v(sc + 5))
        A.v_max3_f32(v(T2), v(T2), v(sc + 6), v(sc + 7))
        A.v_max_f32(v(T2), v(T2), v(T2 + 1))
        allreduce_g(A, 'v_max_f32', T2, T2 + 1)
        for q in range(8):
            A.v_sub_f32(v(sc + q), v(sc + q), v(T2))
        for q in range(8):
            A.v_mul_f32(v(sc + q), s(49), v(sc + q))
        for q in range(8):
            A.v_exp_f32(v(sc + q), v(sc + q))
        A.v_add_f32(v(T2), v(sc), v(sc + 1))
        A.v_add_f32(v(T2 + 1), v(sc + 2), v(sc + 3))
        A.v_add_f32(v(T2 + 2), v(sc + 4), v(sc + 5))
        A.v_add_f32(v(T2 + 3), v(sc + 6), v(sc + 7))
        A.v_add_f32(v(T2), v(T2), v(T2 + 1))
        A.v_add_f32(v(T2 + 2), v(T2 + 2), v(T2 + 3))
        A.v_add_f32(v(T2), v(T2), v(T2 + 2))
        allreduce_g(A, 'v_add_f32', T2, T2 + 1)
        A.v_rcp_f32(v(T2), v(T2))
        for q in range(8):
            A.v_mul_f32(v(sc + q), v(sc + q), v(T2))
        PF = 184
        for q in range(4):
            A.v_cvt_pk_bf16_f32(v(PF + q), v(sc + 2 * q), v(sc + 2 * q + 1))
        OC = 188
        for t in range(2):
            A.v_mfma_f32_16x16x32_bf16(v(OC + 4 * t, 4), v(VF(t, u - 1), 4), v(PF, 4), 0)
        for t in range(2):
            A.v_cvt_pk_bf16_f32(v(196 + 2 * t), v(OC + 4 * t), v(OC + 4 * t + 1))
            A.v_cvt_pk_bf16_f32(v(197 + 2 * t), v(OC + 4 * t + 2), v(OC + 4 * t + 3))
        if u == 2: A.v_add_u32(v(14), 32 * 896, v(14))
        A.buffer_store_dwordx2(v(196, 2), v(14), s(20, 4), s(50), mods='offen')
        A.s_andn2_b64('exec', 'exec', s(42, 2))
        A.buffer_store_dwordx2(v(198, 2), v(14), s(20, 4), s(50), mods='offen offset:32')
        A.s_mov_b64('exec', -1)
    stamp(A, 6)
    stamp_flush(A, 7, 20, 24, 1)
    A.label('k1_end')
    A.s_endpgm()

def register(add):
    add('k1_kernel', k1, 256, 256, K1_LDS, 256, 144)

def common_ids(A):
    A.v_and_b32(v(1), 63, v(0))
    A.v_and_b32(v(2), 15, v(0))
    A.v_bfe_u32(v(3), v(0), 4, 2)
    A.v_lshrrev_b32(v(4), 6, v(0))
    A.v_readfirstlane_b32(s(24), v(4))
    A.s_and_b32(s(25), s(2), 7)
    A.s_lshr_b32(s(26), s(2), 3)

def map_64x56(A):
    A.s_lshl_b32(s(27), s(25), 2)
    A.s_and_b32(s(28), s(26), 3)
    A.s_add_u32(s(27), s(27), s(28))
    A.s_lshr_b32(s(28), s(26), 2)

def dma128_voff(A, dst, par_s, t1, t2):
    A.v_lshrrev_b32(v(dst), 3, v(1))
    A.s_movk_i32(s(33), 896)
    A.v_mul_lo_u32(v(dst), v(dst), s(33))
    A.v_bfe_u32(v(t1), v(1), 4, 1)
    A.s_lshl_b32(s(33), s(par_s), 1)
    A.v_or_b32(v(t1), s(33), v(t1))
    A.v_lshlrev_b32(v(t1), 1, v(t1))
    A.v_and_b32(v(t2), 7, v(1))
    A.v_xor_b32(v(t2), v(t2), v(t1))
    A.v_lshl_add_u32(v(dst), v(t2), 4, v(dst))

def tr128_bases(A, b0, t1, t2, add_s=None):
    A.v_lshrrev_b32(v(t1), 2, v(2))
    A.v_lshl_add_u32(v(t2), v(3), 3, v(t1))
    A.v_lshlrev_b32(v(t2), 7, v(t2))
    A.v_and_b32(v(b0), 3, v(2))
    A.v_lshl_add_u32(v(t2), v(b0), 3, v(t2))
    if add_s is not None: A.v_add_u32(v(t2), s(add_s), v(t2))
    A.v_lshrrev_b32(v(t1), 1, v(t1))
    A.v_and_b32(v(b0), 1, v(3))
    A.v_lshl_or_b32(v(t1), v(b0), 1, v(t1))
    for t in range(4):
        A.v_xor_b32(v(b0 + t), t, v(t1))
        A.v_lshl_add_u32(v(b0 + t), v(b0 + t), 5, v(t2))

def widen_store(A, regs, voff, srd_s, soff, maskrow3_s):
    for P in range(2):
        b = regs + 4 * P
        A.v_permlane16_swap_b32(v(b), v(b + 2))
        A.v_permlane16_swap_b32(v(b + 1), v(b + 3))
    A.buffer_store_dwordx4(v(regs, 4), v(voff), s(srd_s, 4), soff, mods='offen')
    A.s_andn2_b64('exec', 'exec', s(maskrow3_s, 2))
    A.buffer_store_dwordx4(v(regs + 4, 4), v(voff), s(srd_s, 4), soff, mods='offen offset:64')
    A.s_mov_b64('exec', -1)

def unpack(A, lo, hi, src):
    A.v_lshlrev_b32(v(lo), 16, v(src))
    A.v_and_b32(v(hi), '0xffff0000', v(src))

K2_LDS = 57344
def k2(A):
    vm = VM(A)
    A.s_cmp_ge_u32(s(2), 256)
    A.s_cbranch_scc1('k2_end')
    stamp(A, 0)
    A.s_load_dwordx2(s(4, 2), s(0, 2), 0)
    A.s_load_dwordx2(s(6, 2), s(0, 2), 16)
    A.s_load_dwordx2(s(8, 2), s(0, 2), 80)
    common_ids(A); map_64x56(A)
    A.s_and_b32(s(29), s(24), 1)
    dma128_voff(A, 7, 29, 8, 9)
    tr128_bases(A, 8, 12, 13)
    A.s_lshl_b32(s(30), s(27), 6)
    A.s_lshl_b32(s(31), s(24), 4)
    A.s_add_u32(s(30), s(30), s(31))
    A.v_add_u32(v(4), s(30), v(2))
    A.s_movk_i32(s(33), 896)
    A.v_mul_lo_u32(v(5), v(4), s(33))
    A.v_lshl_add_u32(v(6), v(3), 4, v(5))
    A.v_lshl_add_u32(v(12), v(3), 3, v(5))
    A.v_lshlrev_b32(v(13), 4, v(3))
    A.v_and_b32(v(14), 1, v(3))
    A.v_lshl_add_u32(v(14), v(14), 5, v(5))
    A.v_lshrrev_b32(v(15), 1, v(3))
    A.v_lshl_add_u32(v(14), v(15), 4, v(14))
    A.s_mul_i32(s(34), s(28), 112)
    A.s_mul_i32(s(35), s(24), 8 * 896)
    A.s_add_u32(s(35), s(35), s(34))
    A.s_lshl_b32(s(36), s(24), 10)
    A.waitcnt(lgkm=0)
    srd(A, 12, 4, X_BYTES)
    srd(A, 16, 6, 448 * 896)
    srd(A, 20, 8, WS_SIZE)
    for m in range(14):
        A.s_add_u32('m0', s(36), m * 4096)
        A.s_add_u32(s(39), s(35), m * 32 * 896)
        A.buffer_load_dwordx4(v(7), s(16, 4), s(39), mods='offen lds'); vm.issue('dma')
    A.s_mov_b32(s(38), WS_O)
    for ks in range(14):
        A.buffer_load_dwordx4(a(16 + 4 * ks, 4), v(6), s(20, 4), s(38), mods='offen offset:%d' % (ks * 64)); vm.issue(('A', ks))
    for t in range(4):
        A.buffer_load_dwordx2(v(32 + 2 * t, 2), v(12), s(12, 4), s(34), mods='offen offset:%d' % (32 * t)); vm.issue('ep')
    A.s_lshl_b32(s(40), s(34), 1)
    A.s_add_u32(s(41), s(40), 2 * 448 * 4)
    A.s_add_u32(s(42), s(40), 4 * 448 * 4)
    for t in range(4):
        A.buffer_load_dwordx4(v(40 + 4 * t, 4), v(13), s(20, 4), s(41), mods='offen offset:%d' % (64 * t)); vm.issue('ep')
        A.buffer_load_dwordx4(v(56 + 4 * t, 4), v(13), s(20, 4), s(42), mods='offen offset:%d' % (64 * t)); vm.issue('ep')
    stamp(A, 1)
    vm.wait('dma')
    A.s_barrier()
    stamp(A, 2)
    BF = lambda buf, t: 80 + buf * 16 + t * 4
    def rdB(ks):
        return [Ins('ds_read_b64_tr_b16', [a(BF(ks & 1, t) + 2 * hf, 2), v(8 + t)], 'offset:%d' % (ks * 4096 + hf * 512)) for t in range(4) for hf in range(2)]
    if STAMP: A.waitcnt(lgkm=0)
    for x in rdB(0): A.add(x)
    for ks in range(14):
        if ks + 1 < 14:
            nx = rdB(ks + 1)
            for x in nx[:6]: A.add(x)
            A.waitcnt(lgkm=6)
            for x in nx[6:]: A.add(x)
        else:
            A.waitcnt(lgkm=0)
        vm.wait(('A', ks))
        for t in range(4):
            A.v_mfma_f32_16x16x32_bf16(a(4 * t, 4), a(BF(ks & 1, t), 4), a(16 + 4 * ks, 4), 0 if ks == 0 else a(4 * t, 4))
    stamp(A, 3)
    vm.wait('ep')
    Y = 72
    for q in range(16): A.v_accvgpr_read_b32(v(Y + q), a(q))
    PK = 88
    for q in range(8): A.v_cvt_pk_bf16_f32(v(PK + q), v(Y + 2 * q), v(Y + 2 * q + 1))
    for q in range(8): unpack(A, Y + 2 * q, Y + 2 * q + 1, PK + q)
    for q in range(16): A.v_mul_f32(v(Y + q), v(40 + q), v(Y + q))
    for q in range(8): A.v_cvt_pk_bf16_f32(v(PK + q), v(Y + 2 * q), v(Y + 2 * q + 1))
    for q in range(8): unpack(A, Y + 2 * q, Y + 2 * q + 1, PK + q)
    XV = 96
    for q in range(8): unpack(A, XV + 2 * q, XV + 2 * q + 1, 32 + q)
    for q in range(16): A.v_add_f32(v(Y + q), v(XV + q), v(Y + q))
    for q in range(8): A.v_cvt_pk_bf16_f32(v(PK + q), v(Y + 2 * q), v(Y + 2 * q + 1))
    for q in range(8): unpack(A, Y + 2 * q, Y + 2 * q + 1, PK + q)
    A.v_cmp_lt_u32('vcc', 1, v(3))
    for q in range(12, 16): A.v_cndmask_b32(v(Y + q), v(Y + q), 0, 'vcc')
    A.v_add_f32(v(112), v(Y), v(Y + 1))
    A.v_mul_f32(v(113), v(Y), v(Y))
    for q in range(2, 16): A.v_add_f32(v(112), v(112), v(Y + q))
    for q in range(1, 16): A.v_fmac_f32(v(113), v(Y + q), v(Y + q))
    for q in range(16): A.v_mul_f32(v(XV + q), v(56 + q), v(Y + q))
    PG = 116
    for q in range(8): A.v_cvt_pk_bf16_f32(v(PG + q), v(XV + 2 * q), v(XV + 2 * q + 1))
    allreduce_g(A, 'v_add_f32', 112, 114)
    allreduce_g(A, 'v_add_f32', 113, 114)
    A.v_cmp_eq_u32(s(44, 2), 3, v(3))
    A.s_add_u32(s(46), s(34), WS_X1)
    A.s_add_u32(s(47), s(34), WS_XG)
    widen_store(A, PK, 14, 20, s(46), 44)
    widen_store(A, PG, 14, 20, s(47), 44)
    A.v_lshlrev_b32(v(15), 6, v(4))
    A.s_lshl_b32(s(48), s(28), 3)
    A.s_add_u32(s(48), s(48), WS_ST2)
    A.v_cmp_eq_u32('vcc', 0, v(3))
    A.s_and_saveexec_b64(s(50, 2), 'vcc')
    A.buffer_store_dwordx2(v(112, 2), v(15), s(20, 4), s(48), mods='offen')
    A.s_mov_b64('exec', -1)
    stamp(A, 4)
    stamp_flush(A, 5, 20, 24, 2)
    A.label('k2_end')
    A.s_endpgm()

K3_CB = 114688
K3_LDS = K3_CB + 1024
def k3(A):
    vm = VM(A)
    A.s_cmp_ge_u32(s(2), 256)
    A.s_cbranch_scc1('k3_end')
    stamp(A, 0)
    A.s_load_dwordx2(s(6, 2), s(0, 2), 32)
    A.s_load_dwordx2(s(8, 2), s(0, 2), 80)
    common_ids(A)
    A.s_lshl_b32(s(27), s(25), 1)
    A.s_and_b32(s(28), s(26), 1)
    A.s_add_u32(s(27), s(27), s(28))
    A.s_lshr_b32(s(28), s(26), 1)
    A.s_bfe_u32(s(29), s(24), 0x10001)
    A.s_lshl_b32(s(29), s(29), 2)
    A.v_or_b32(v(5), s(29), v(3))
    A.v_lshrrev_b32(v(6), 1, v(2))
    A.v_xor_b32(v(5), v(5), v(6))
    A.v_cmp_gt_u32(s(52, 2), 7, v(5))
    A.s_movk_i32(s(33), 3584)
    A.v_mul_lo_u32(v(7), v(3), s(33))
    A.v_lshl_add_u32(v(7), v(5), 5, v(7))
    A.v_and_b32(v(6), 1, v(2))
    A.v_lshl_add_u32(v(7), v(6), 4, v(7))
    A.s_mul_i32(s(34), s(28), 224)
    A.s_mul_i32(s(35), s(24), 4 * 3584)
    A.s_add_u32(s(35), s(35), s(34))
    A.s_lshl_b32(s(36), s(24), 10)
    A.v_lshrrev_b32(v(8), 2, v(2))
    A.v_lshl_add_u32(v(9), v(3), 3, v(8))
    A.v_lshlrev_b32(v(9), 8, v(9))
    A.v_and_b32(v(10), 3, v(2))
    A.v_lshl_add_u32(v(9), v(10), 3, v(9))
    A.v_and_b32(v(10), 1, v(3))
    A.v_lshl_or_b32(v(8), v(10), 2, v(8))
    A.s_lshl_b32(s(30), s(27), 7)
    A.s_lshl_b32(s(31), s(24), 5)
    A.s_add_u32(s(30), s(30), s(31))
    A.v_add_u32(v(4), s(30), v(2))
    A.s_movk_i32(s(33), 896)
    A.v_mul_lo_u32(v(5), v(4), s(33))
    A.v_lshl_add_u32(v(5), v(3), 4, v(5))
    A.v_add_u32(v(6), 16 * 896, v(5))
    A.v_lshlrev_b32(v(11), 4, v(3))
    A.v_add_u32(v(12), WS_MODB + 4 * 896, v(11))
    A.v_add_u32(v(13), WS_MODB + 3 * 896, v(11))
    A.v_bfrev_b32(v(11), 1)
    A.v_cmp_eq_u32('vcc', 0, v(2))
    A.v_cndmask_b32(v(11), v(11), v(12), 'vcc')
    A.v_cmp_eq_u32('vcc', 1, v(2))
    A.v_cndmask_b32(v(11), v(11), v(13), 'vcc')
    A.v_lshlrev_b32(v(12), 6, v(4))
    A.waitcnt(lgkm=0)
    srd(A, 16, 6, 448 * 3584)
    srd(A, 20, 8, WS_SIZE)
    SPF = lambda ks: 32 + 4 * ks
    for ks in range(14):
        A.buffer_load_dwordx4(v(SPF(ks), 4), v(11), s(20, 4), 0, mods='offen offset:%d' % (ks * 64)); vm.issue('sp')
    A.s_mov_b64('exec', s(52, 2))
    for m in range(28):
        A.s_add_u32('m0', s(36), m * 4096)
        A.s_add_u32(s(39), s(35), m * 16 * 3584)
        A.buffer_load_dwordx4(v(7), s(16, 4), s(39), mods='offen lds'); vm.issue('dma')
    A.s_mov_b64('exec', -1)
    AF = lambda u, ks: 64 + (u * 14 + ks) * 4
    A.s_mov_b32(s(38), WS_XG)
    for ks in range(7):
        for u in range(2):
            A.buffer_load_dwordx4(a(AF(u, ks), 4), v(5 + u), s(20, 4), s(38), mods='offen offset:%d' % (ks * 64)); vm.issue('A')
    stamp(A, 1)
    vm.wait('dma')
    for ks in range(7, 14):
        for u in range(2):
            A.buffer_load_dwordx4(a(AF(u, ks), 4), v(5 + u), s(20, 4), s(38), mods='offen offset:%d' % (ks * 64)); vm.issue('A')
    A.s_mov_b32(s(38), WS_ST2)
    for u in range(2):
        for q in range(4):
            A.buffer_load_dwordx4(v(96 + u * 16 + 4 * q, 4), v(12), s(20, 4), s(38), mods='offen offset:%d' % (u * 1024 + 16 * q)); vm.issue('st')
    A.s_barrier()
    stamp(A, 2)
    BF = lambda buf: 16 + buf * 4
    def bases_for_t_s(treg):
        A.v_xor_b32(v(14), s(treg), v(8))
        A.v_lshl_add_u32(v(14), v(14), 5, v(9))
        A.v_add_u32(v(15), 7 * 8192, v(14))
    def rdB(ks, dst):
        return [Ins('ds_read_b64_tr_b16', [a(dst + 2 * hf, 2), v(14 + (ks >= 7))], 'offset:%d' % ((ks % 7) * 8192 + hf * 1024)) for hf in range(2)]
    A.s_mov_b32(s(40), s(24))
    A.label('k3_sp_loop')
    bases_for_t_s(40)
    for ks in range(14):
        for x in rdB(ks, 176 + 4 * ks): A.add(x)
        if ks == 6: A.waitcnt(lgkm=0)
    A.waitcnt(lgkm=0)
    for ks in range(14):
        A.v_mfma_f32_16x16x32_bf16(v(88, 4), a(176 + 4 * ks, 4), v(SPF(ks), 4), 0 if ks == 0 else v(88, 4))
    A.v_lshlrev_b32(v(16), 9, v(2))
    A.v_lshl_add_u32(v(16), v(3), 4, v(16))
    A.s_lshl_b32(s(41), s(40), 6)
    A.s_add_u32(s(41), s(41), K3_CB)
    A.v_add_u32(v(16), s(41), v(16))
    A.v_cmp_gt_u32('vcc', 2, v(2))
    A.s_and_saveexec_b64(s(42, 2), 'vcc')
    A.ds_write_b128(v(16), v(88, 4))
    A.s_mov_b64('exec', -1)
    A.s_add_u32(s(40), s(40), 4)
    A.s_cmp_lt_u32(s(40), 7)
    A.s_cbranch_scc1('k3_sp_loop')
    A.waitcnt(lgkm=0)
    A.s_barrier()
    stamp(A, 3)
    vm.wait('st')
    A.s_mov_b32(s(44), hex(0x3b124925)); A.s_mov_b32(s(45), hex(0x3727c5ac))
    for u in range(2):
        b = 96 + u * 16
        for st in (8, 4, 2):
            for q in range(st):
                A.v_add_f32(v(b + q), v(b + q), v(b + q + st))
        m_, r_ = b, b + 1
        A.v_mul_f32(v(m_), s(44), v(m_)); A.v_mul_f32(v(r_), s(44), v(r_))
        A.v_fma_f32(v(r_), '-' + v(m_), v(m_), v(r_))
        A.v_max_f32(v(r_), 0, v(r_))
        bf16r(A, m_, m_); bf16r(A, r_, r_)
        A.v_add_f32(v(r_), s(45), v(r_)); bf16r(A, r_, r_)
        A.v_sqrt_f32(v(r_), v(r_)); bf16r(A, r_, r_)
        A.v_rcp_f32(v(r_), v(r_))
    A.s_movk_i32(s(33), 3584)
    A.v_mul_lo_u32(v(17), v(4), s(33))
    A.v_lshl_add_u32(v(19), v(3), 3, v(17))
    A.v_and_b32(v(18), 1, v(3))
    A.v_lshl_add_u32(v(17), v(18), 5, v(17))
    A.v_lshrrev_b32(v(18), 1, v(3))
    A.v_lshl_add_u32(v(17), v(18), 4, v(17))
    A.v_add_u32(v(18), 16 * 3584, v(17))
    A.v_add_u32(v(20), 16 * 3584, v(19))
    A.s_add_u32(s(46), s(34), WS_HM)
    A.v_lshlrev_b32(v(21), 4, v(3))
    A.v_add_u32(v(21), K3_CB, v(21))
    A.s_mov_b32(s(49), hex(LOG2E))
    vm.wait('A')
    stamp(A, 4)
    for t in range(7):
        A.v_xor_b32(v(14), t, v(8))
        A.v_lshl_add_u32(v(14), v(14), 5, v(9))
        A.v_add_u32(v(15), 7 * 8192, v(14))
        A.ds_read_b128(v(24, 4), v(21), mods='offset:%d' % (t * 64))
        A.ds_read_b128(v(28, 4), v(21), mods='offset:%d' % (512 + t * 64))
        for ks in range(6):
            for x in rdB(ks, 176 + 4 * ks): A.add(x)
        for ks in range(14):
            if ks + 6 < 14:
                A.waitcnt(lgkm=10)
                for x in rdB(ks + 6, 176 + 4 * (ks + 6)): A.add(x)
            else:
                A.waitcnt(lgkm=2 * (13 - ks))
            for u in range(2):
                A.v_mfma_f32_16x16x32_bf16(a(4 * u, 4), a(176 + 4 * ks, 4), a(AF(u, ks), 4), 0 if ks == 0 else a(4 * u, 4))
        T = 128
        for u in range(2):
            for r in range(4): A.v_accvgpr_read_b32(v(T + 4 * u + r), a(4 * u + r))
        for u in range(2):
            for r in range(4): A.v_fma_f32(v(T + 4 * u + r), '-' + v(96 + 16 * u), v(24 + r), v(T + 4 * u + r))
        for u in range(2):
            for r in range(4): A.v_fma_f32(v(T + 4 * u + r), v(97 + 16 * u), v(T + 4 * u + r), v(28 + r))
        for q in range(4): A.v_cvt_pk_bf16_f32(v(T + 16 + q), v(T + 2 * q), v(T + 2 * q + 1))
        for q in range(4): unpack(A, T + 2 * q, T + 2 * q + 1, T + 16 + q)
        for q in range(8): A.v_mul_f32(v(T + 8 + q), s(49), v(T + q))
        for q in range(8): A.v_exp_f32(v(T + 8 + q), '-' + v(T + 8 + q))
        for q in range(8): A.v_add_f32(v(T + 8 + q), 1.0, v(T + 8 + q))
        for q in range(8): A.v_rcp_f32(v(T + 8 + q), v(T + 8 + q))
        for q in range(8): A.v_mul_f32(v(T + q), v(T + q), v(T + 8 + q))
        OP = lambda u: 152 + 4 * u + 2 * (t & 1)
        for u in range(2):
            A.v_cvt_pk_bf16_f32(v(OP(u)), v(T + 4 * u), v(T + 4 * u + 1))
            A.v_cvt_pk_bf16_f32(v(OP(u) + 1), v(T + 4 * u + 2), v(T + 4 * u + 3))
        if t & 1:
            for u in range(2):
                b = 152 + 4 * u
                A.v_permlane16_swap_b32(v(b), v(b + 2))
                A.v_permlane16_swap_b32(v(b + 1), v(b + 3))
                A.buffer_store_dwordx4(v(b, 4), v(17 + u), s(20, 4), s(46), mods='offen offset:%d' % ((t - 1) * 32))
        elif t == 6:
            for u in range(2):
                A.buffer_store_dwordx2(v(152 + 4 * u, 2), v(19 + u), s(20, 4), s(46), mods='offen offset:%d' % (t * 32))
    stamp(A, 5)
    stamp_flush(A, 6, 20, 24, 3)
    A.label('k3_end')
    A.s_endpgm()

K4_LDS = 114688
def k4(A):
    vm = VM(A)
    A.s_cmp_ge_u32(s(2), 256)
    A.s_cbranch_scc1('k4_end')
    stamp(A, 0)
    A.s_load_dwordx2(s(6, 2), s(0, 2), 40)
    A.s_load_dwordx2(s(4, 2), s(0, 2), 64)
    A.s_load_dwordx2(s(8, 2), s(0, 2), 80)
    common_ids(A); map_64x56(A)
    A.s_mov_b32(s(29), 0)
    dma128_voff(A, 6, 29, 8, 9)
    A.v_xor_b32(v(7), 64, v(6))
    A.s_mul_i32(s(36), s(24), 28672)
    tr128_bases(A, 8, 12, 13, add_s=36)
    A.s_mul_i32(s(34), s(28), 112)
    A.s_mul_i32(s(35), s(24), 448 * 896)
    A.s_add_u32(s(35), s(35), s(34))
    A.s_lshl_b32(s(30), s(27), 6)
    A.v_add_u32(v(4), s(30), v(2))
    A.s_movk_i32(s(33), 3584)
    A.v_mul_lo_u32(v(12), v(4), s(33))
    A.v_lshl_add_u32(v(12), v(3), 4, v(12))
    for u in range(1, 4): A.v_add_u32(v(12 + u), u * 16 * 3584, v(12))
    A.s_mul_i32(s(38), s(24), 896)
    A.s_add_u32(s(38), s(38), WS_HM)
    A.s_lshl_b32(s(31), s(24), 4)
    A.v_add_u32(v(4), s(31), v(4))
    A.s_movk_i32(s(33), 896)
    A.v_mul_lo_u32(v(5), v(4), s(33))
    A.v_lshl_add_u32(v(16), v(3), 3, v(5))
    A.v_lshlrev_b32(v(17), 4, v(3))
    A.v_and_b32(v(18), 1, v(3))
    A.v_lshl_add_u32(v(18), v(18), 5, v(5))
    A.v_lshrrev_b32(v(19), 1, v(3))
    A.v_lshl_add_u32(v(18), v(19), 4, v(18))
    A.waitcnt(lgkm=0)
    srd(A, 12, 4, X_BYTES)
    srd(A, 16, 6, 1792 * 896)
    srd(A, 20, 8, WS_SIZE)
    def dma(rnd):
        for n in range(28):
            A.s_add_u32('m0', s(36), n * 1024)
            A.s_add_u32(s(39), s(35), (rnd * 224 + n * 8) * 896)
            A.buffer_load_dwordx4(v(6 + (n & 1)), s(16, 4), s(39), mods='offen lds'); vm.issue(('dma', rnd))
    AF = lambda u, ks: 32 + (ks * 4 + u) * 4
    def aload(ks):
        for u in range(4):
            A.buffer_load_dwordx4(v(AF(u, ks), 4), v(12 + u), s(20, 4), s(38), mods='offen offset:%d' % (ks * 64)); vm.issue(('A', ks))
    dma(0)
    for ks in range(8): aload(ks)
    stamp(A, 1)
    vm.wait(('dma', 0))
    stamp(A, 2)
    B1 = lambda ks, t: 64 + (ks * 4 + t) * 4
    if STAMP: A.waitcnt(lgkm=0)
    for ks in range(7):
        for t in range(4):
            for hf in range(2):
                A.ds_read_b64_tr_b16(a(B1(ks, t) + 2 * hf, 2), v(8 + t), mods='offset:%d' % (ks * 4096 + hf * 512))
        A.waitcnt(lgkm=4)
    A.waitcnt(lgkm=0)
    dma(1)
    for ks in range(7):
        vm.wait(('A', ks))
        for t in range(4):
            for u in range(4):
                acc = a((u * 4 + t) * 4, 4)
                A.v_mfma_f32_16x16x32_bf16(acc, a(B1(ks, t), 4), v(AF(u, ks), 4), 0 if ks == 0 else acc)
        if ks < 6: aload(ks + 8)
    A.s_add_u32(s(41), s(34), WS_X1)
    for t in range(4):
        A.buffer_load_dwordx2(v(20 + 2 * t, 2), v(16), s(20, 4), s(41), mods='offen offset:%d' % (32 * t)); vm.issue('ep')
    A.s_lshl_b32(s(40), s(34), 1)
    A.s_add_u32(s(40), s(40), 5 * 448 * 4)
    for t in range(4):
        A.buffer_load_dwordx4(a(208 + 4 * t, 4), v(17), s(20, 4), s(40), mods='offen offset:%d' % (64 * t)); vm.issue('ep')
    stamp(A, 3)
    vm.wait(('dma', 1))
    for ks in range(7):
        for t in range(4):
            for hf in range(2):
                A.ds_read_b64_tr_b16(a(B1(ks, t) + 2 * hf, 2), v(8 + t), mods='offset:%d' % (ks * 4096 + hf * 512))
        A.waitcnt(lgkm=4)
    A.waitcnt(lgkm=0)
    for ks in range(7):
        vm.wait(('A', ks + 7))
        for t in range(4):
            for u in range(4):
                acc = a((u * 4 + t) * 4, 4)
                A.v_mfma_f32_16x16x32_bf16(acc, a(B1(ks, t), 4), v(AF(u, ks + 7), 4), acc)
    stamp(A, 4)
    A.s_barrier()
    A.v_lshlrev_b32(v(28), 4, v(1))
    A.s_lshl_b32(s(42), s(24), 12)
    A.v_add_u32(v(29), s(42), v(28))
    for u in range(4):
        for t in range(4):
            A.ds_write_b128(v(29), a((u * 4 + t) * 4, 4), mods='offset:%d' % (u * 16384 + t * 1024))
    A.waitcnt(lgkm=0)
    A.s_barrier()
    A.s_lshl_b32(s(42), s(24), 14)
    A.v_add_u32(v(29), s(42), v(28))
    for w in range(4):
        for t in range(4):
            A.ds_read_b128(v(32 + (w * 4 + t) * 4, 4), v(29), mods='offset:%d' % (w * 4096 + t * 1024))
        if w == 1: A.waitcnt(lgkm=0)
    A.waitcnt(lgkm=0)
    for q in range(16): A.v_add_f32(v(32 + q), v(32 + q), v(48 + q))
    for q in range(16): A.v_add_f32(v(64 + q), v(64 + q), v(80 + q))
    for q in range(16): A.v_add_f32(v(32 + q), v(32 + q), v(64 + q))
    vm.wait('ep')
    Y = 32; PK = 100; G = 48; XV = 64
    for q in range(16): A.v_accvgpr_read_b32(v(G + q), a(208 + q))
    for q in range(8): A.v_cvt_pk_bf16_f32(v(PK + q), v(Y + 2 * q), v(Y + 2 * q + 1))
    for q in range(8): unpack(A, Y + 2 * q, Y + 2 * q + 1, PK + q)
    for q in range(16): A.v_mul_f32(v(Y + q), v(G + q), v(Y + q))
    for q in range(8): A.v_cvt_pk_bf16_f32(v(PK + q), v(Y + 2 * q), v(Y + 2 * q + 1))
    for q in range(8): unpack(A, Y + 2 * q, Y + 2 * q + 1, PK + q)
    for q in range(8): unpack(A, XV + 2 * q, XV + 2 * q + 1, 20 + q)
    for q in range(16): A.v_add_f32(v(Y + q), v(XV + q), v(Y + q))
    for q in range(8): A.v_cvt_pk_bf16_f32(v(PK + q), v(Y + 2 * q), v(Y + 2 * q + 1))
    A.v_cmp_eq_u32(s(44, 2), 3, v(3))
    widen_store(A, PK, 18, 12, s(34), 44)
    stamp(A, 5)
    stamp_flush(A, 6, 20, 24, 4)
    A.label('k4_end')
    A.s_endpgm()

def register(add):
    add('k1_kernel', k1, 256, 256, K1_LDS, 256, 144)
    add('k2_kernel', k2, 256, 256, K2_LDS, 128, 112)
    add('k3_kernel', k3, 256, 256, K3_LDS, 160, 232)
    add('k4_kernel', k4, 256, 256, K4_LDS, 256, 224)
```

```python
S, D, F, H, DH = 2048, 448, 1792, 16, 28
WS_MOD   = 0
WS_MODB  = 16384
WS_FLAGS = 32768
WS_ST1   = 65536
WS_ST2   = 131072
WS_O     = 1 << 20
WS_X1    = 3 << 20
WS_XG    = 5 << 20
WS_HM    = 8 << 20
WS_END   = 16 << 20
WS_SIZE  = 268435456
```

```python
import sys
from dsl import *
from layout import *

X_BYTES = S * D * 2
LOG2E = 0x3fb8aa3b

def srd(A, dst, ptr, nbytes):
    A.s_mov_b32(s(dst), s(ptr))
    A.s_and_b32(s(dst + 1), s(ptr + 1), '0xffff')
    A.s_mov_b32(s(dst + 2), hex(nbytes))
    A.s_mov_b32(s(dst + 3), '0x20000')

def bf16r(A, dst, src, tmp=None):
    A.v_cvt_pk_bf16_f32(v(dst), v(src), v(src))
    A.v_lshlrev_b32(v(dst), 16, v(dst))

DPPM = 'row_mask:0xf bank_mask:0xf'

def k0(A):
    A.s_cmp_ge_u32(s(2), 256)
    A.s_cbranch_scc1('k0_end')
    A.s_load_dwordx2(s(4, 2), s(0, 2), 0)
    A.s_load_dwordx4(s(8, 4), s(0, 2), 48)
    A.s_load_dwordx2(s(12, 2), s(0, 2), 80)
    A.v_and_b32(v(1), 63, v(0))
    A.v_lshrrev_b32(v(2), 6, v(0))
    A.v_lshlrev_b32(v(3), 1, v(2))
    A.s_lshl_b32(s(3), s(2), 3)
    A.v_add_u32(v(3), s(3), v(3))
    A.s_movk_i32(s(14), 896)
    A.v_mul_lo_u32(v(4), v(3), s(14))
    A.v_lshl_add_u32(v(4), v(1), 4, v(4))
    A.v_cmp_gt_u32('vcc', 56, v(1))
    A.v_bfrev_b32(v(5), 1)
    A.v_cndmask_b32(v(4), v(5), v(4), 'vcc')
    A.v_lshrrev_b32(v(6), 1, v(0))
    A.s_movk_i32(s(14), 5376)
    A.v_mul_lo_u32(v(7), v(6), s(14))
    A.v_and_b32(v(8), 1, v(0))
    A.v_lshl_add_u32(v(7), v(8), 4, v(7))
    A.s_lshl_b32(s(15), s(2), 5)
    A.v_add_u32(v(7), s(15), v(7))
    A.v_lshlrev_b32(v(9), 1, v(6))
    A.waitcnt(lgkm=0)
    srd(A, 16, 4, X_BYTES)
    srd(A, 20, 8, 896)
    srd(A, 24, 10, 448 * 5376)
    srd(A, 28, 12, WS_SIZE)
    A.s_cmp_ge_u32(s(2), 168)
    A.s_cbranch_scc1('k0_nomod1')
    for p in range(4):
        A.buffer_load_ushort(v(10 + p), v(9), s(20, 4), 0, mods='offen offset:%d' % (256 * p))
    A.s_mov_b32(s(32), 0)
    A.s_mov_b32(s(33), 128 * 5376)
    A.s_mov_b32(s(34), 256 * 5376)
    A.s_mov_b32(s(35), 384 * 5376)
    for p in range(4):
        A.buffer_load_dwordx4(v(16 + 4 * p, 4), v(7), s(24, 4), s(32 + p), mods='offen')
    A.label('k0_nomod1')
    A.buffer_load_dwordx4(v(32, 4), v(4), s(16, 4), 0, mods='offen')
    A.buffer_load_dwordx4(v(36, 4), v(4), s(16, 4), 0, mods='offen offset:896')
    A.s_cmp_ge_u32(s(2), 168)
    A.s_cbranch_scc1('k0_stats')
    A.waitcnt(vm=6)
    A.s_mov_b32(s(36), hex(LOG2E))
    for p in range(4):
        c = 10 + p
        A.v_lshlrev_b32(v(c), 16, v(c))
        A.v_mul_f32(v(40 + p), s(36), v(c))
    for p in range(4):
        A.v_exp_f32(v(40 + p), '-' + v(40 + p))
    for p in range(4):
        A.v_add_f32(v(40 + p), 1.0, v(40 + p))
    for p in range(4):
        A.v_rcp_f32(v(40 + p), v(40 + p))
    for p in range(4):
        A.v_mul_f32(v(40 + p), v(40 + p), v(10 + p))
    for p in range(4):
        A.v_cvt_pk_bf16_f32(v(40 + p), v(40 + p), v(40 + p))
    for p in range(4):
        A.v_and_b32(v(44 + p), '0xffff', v(40 + p))
        A.v_and_b32(v(40 + p), '0xffff0000', v(40 + p))
    for p in range(4):
        A.waitcnt(vm=5 - p)
        for j in range(4):
            w = 16 + 4 * p + j
            A.v_dot2_f32_bf16(v(48 + 2 * j), v(w), v(44 + p), 0 if p == 0 else v(48 + 2 * j))
            A.v_dot2_f32_bf16(v(49 + 2 * j), v(w), v(40 + p), 0 if p == 0 else v(49 + 2 * j))
    for sh in (2, 4, 8):
        for j in range(8):
            A.v_add_f32_dpp(v(48 + j), v(48 + j), v(48 + j), mods='row_ror:%d %s' % (sh, DPPM))
    A.v_lshrrev_b32(v(56), 4, v(0))
    A.v_lshlrev_b32(v(56), 6, v(56))
    A.v_lshl_add_u32(v(56), v(8), 5, v(56))
    A.v_and_b32(v(57), 14, v(0))
    A.v_cmp_eq_u32('vcc', 0, v(57))
    A.s_and_saveexec_b64(s(38, 2), 'vcc')
    A.ds_write_b128(v(56), v(48, 4))
    A.ds_write_b128(v(56), v(52, 4), mods='offset:16')
    A.s_mov_b64('exec', s(38, 2))
    A.waitcnt(lgkm=0)
    A.s_barrier()
    A.v_cmp_gt_u32('vcc', 16, v(0))
    A.s_and_saveexec_b64(s(38, 2), 'vcc')
    A.s_cbranch_execz('k0_modend')
    A.v_lshlrev_b32(v(56), 2, v(0))
    for i in range(16):
        A.ds_read_b32(v(60 + i), v(56), mods='offset:%d' % (64 * i))
    A.waitcnt(lgkm=0)
    for st in (8, 4, 2, 1):
        for i in range(st):
            A.v_add_f32(v(60 + i), v(60 + i), v(60 + i + st))
    bf16r(A, 60, 60)
    A.v_add_f32(v(61), 1.0, v(60))
    bf16r(A, 61, 61)
    A.s_sub_u32(s(40), s(2), 28)
    A.s_cmp_lt_u32(s(40), 28)
    A.s_cselect_b32(s(41), 1, 0)
    A.s_sub_u32(s(40), s(2), 112)
    A.s_cmp_lt_u32(s(40), 28)
    A.s_cselect_b32(s(41), 1, s(41))
    A.s_cmp_eq_u32(s(41), 1)
    A.s_cselect_b64('vcc', -1, 0)
    A.s_nop(1)
    A.v_cndmask_b32(v(60), v(60), v(61), 'vcc')
    A.s_lshl_b32(s(40), s(2), 6)
    A.buffer_store_dword(v(60), v(56), s(28, 4), s(40), mods='offen')
    A.v_lshrrev_b32(v(61), 16, v(60))
    A.v_lshlrev_b32(v(57), 1, v(0))
    A.s_add_u32(s(40), s(15), WS_MODB)
    A.buffer_store_short(v(61), v(57), s(28, 4), s(40), mods='offen')
    A.label('k0_modend')
    A.s_mov_b64('exec', s(38, 2))
    A.label('k0_stats')
    A.waitcnt(vm=0)
    A.v_mov_b32(v(40), '0x3f803f80')
    for r in range(2):
        for j in range(4):
            x = 32 + 4 * r + j
            A.v_dot2_f32_bf16(v(44 + 2 * r), v(x), v(40), 0 if j == 0 else v(44 + 2 * r))
            A.v_dot2_f32_bf16(v(45 + 2 * r), v(x), v(x), 0 if j == 0 else v(45 + 2 * r))
    for sh in (1, 2, 4, 8):
        for j in range(4):
            A.v_add_f32_dpp(v(44 + j), v(44 + j), v(44 + j), mods='row_ror:%d %s' % (sh, DPPM))
    for j in range(4):
        A.v_add_f32_dpp(v(44 + j), v(44 + j), v(44 + j), mods='row_bcast:15 row_mask:0xa bank_mask:0xf')
    for j in range(4):
        A.v_add_f32_dpp(v(44 + j), v(44 + j), v(44 + j), mods='row_bcast:31 row_mask:0xc bank_mask:0xf')
    A.s_mov_b32(s(36), hex(0x3b124925))
    A.s_mov_b32(s(37), hex(0x3727c5ac))
    for r in range(2):
        A.v_mul_f32(v(44 + 2 * r), s(36), v(44 + 2 * r))
        A.v_mul_f32(v(45 + 2 * r), s(36), v(45 + 2 * r))
        A.v_fma_f32(v(45 + 2 * r), '-' + v(44 + 2 * r), v(44 + 2 * r), v(45 + 2 * r))
        A.v_max_f32(v(45 + 2 * r), 0, v(45 + 2 * r))
        bf16r(A, 44 + 2 * r, 44 + 2 * r)
        bf16r(A, 45 + 2 * r, 45 + 2 * r)
        A.v_add_f32(v(45 + 2 * r), s(37), v(45 + 2 * r))
        bf16r(A, 45 + 2 * r, 45 + 2 * r)
        A.v_sqrt_f32(v(45 + 2 * r), v(45 + 2 * r))
        bf16r(A, 45 + 2 * r, 45 + 2 * r)
        A.v_rcp_f32(v(45 + 2 * r), v(45 + 2 * r))
    A.v_lshlrev_b32(v(50), 2, v(3))
    A.v_cmp_eq_u32('vcc', 63, v(1))
    A.s_and_saveexec_b64(s(38, 2), 'vcc')
    A.s_mov_b32(s(40), WS_ST1)
    A.s_mov_b32(s(41), WS_ST1 + 8192)
    A.buffer_store_dwordx2(v(44, 2), v(50), s(28, 4), s(40), mods='offen')
    A.buffer_store_dwordx2(v(46, 2), v(50), s(28, 4), s(41), mods='offen')
    A.label('k0_end')
    A.s_endpgm()

KERNELS = []
def add(name, fn, grid, block, lds, vgpr, agpr=0, sgpr=100):
    KERNELS.append((name, fn, grid, block, lds, vgpr, agpr, sgpr))

def build():
    hdr = open('adaLN_cond__sliding_local_dilated__dense_activation_silu__prompt.s.ref').read().split('\n')
    out = [l for l in hdr if l.startswith(';') and '@launch' not in l and 'Override' not in l and 'grid=ceil' not in l]
    for (name, fn, grid, block, lds, vgpr, agpr, sgpr) in KERNELS:
        out.append('; @launch kernel=%s grid=(%d,1,1) block=(%d,1,1) lds=%d' % (name, grid, block, lds))
    out.append('.amdgcn_target "amdgcn-amd-amdhsa--gfx950"')
    out.append('.text')
    seen = set()
    for (name, fn, grid, block, lds, vgpr, agpr, sgpr) in KERNELS:
        if name in seen: continue
        seen.add(name)
        out += ['.globl %s' % name, '.p2align 8', '.type %s,@function' % name, name + ':']
        A = Asm(); fn(A); out.append(A.finish())
    out += ['.section .rodata,"a"']
    seen = set()
    for (name, fn, grid, block, lds, vgpr, agpr, sgpr) in KERNELS:
        if name in seen: continue
        seen.add(name)
        acc = (vgpr + 3) // 4 * 4
        out += ['.p2align 6', '.amdhsa_kernel %s' % name,
                '  .amdhsa_next_free_vgpr %d' % (acc + agpr if agpr else vgpr),
                '  .amdhsa_next_free_sgpr %d' % sgpr,
                '  .amdhsa_accum_offset %d' % acc,
                '  .amdhsa_group_segment_fixed_size 0', '  .amdhsa_kernarg_size 88',
                '  .amdhsa_user_sgpr_count 2', '  .amdhsa_user_sgpr_kernarg_segment_ptr 1',
                '  .amdhsa_system_sgpr_workgroup_id_x 1', '.end_amdhsa_kernel']
    return '\n'.join(out) + '\n'

if __name__ == '__main__':
    add('k0_kernel', k0, 256, 256, 1024, 80)
    try:
        import kern
        kern.register(add)
    except ImportError:
        pass
    path = sys.argv[1] if len(sys.argv) > 1 else 'adaLN_cond__sliding_local_dilated__dense_activation_silu__prompt.s'
    open(path, 'w').write(build())
```
